```python
import torch

def _softmax(x, axis=-1):
    return torch.softmax(x, dim=axis)
def _gelu(x):
    return torch.nn.functional.gelu(x, approximate="tanh")
def _silu(x):
    return torch.nn.functional.silu(x)
def _sigmoid(x):
    return torch.sigmoid(x)
def _layernorm(x, axis=-1, eps=1e-5):
    m = x.mean(dim=axis, keepdim=True)
    v = x.var(dim=axis, keepdim=True, unbiased=False)
    return (x - m) / torch.sqrt(v + eps)
def _scatter_add(tgt, idx, src, axis=0):
    return tgt.clone().index_add_(axis, idx, src)
def _segment_sum(src, seg, n):
    out = torch.zeros((n,) + src.shape[1:], dtype=src.dtype)
    return out.index_add_(0, seg, src)
def _pad(x, pw):
    flat = tuple(v for pair in reversed(pw) for v in pair)
    return torch.nn.functional.pad(x, flat)

kernel_name = 'standalone__gqa_softmax__near_ridge'

def setup_inputs():

    _w = (lambda a: (lambda t: t.to(torch.bfloat16) if t.is_floating_point() else t)(torch.as_tensor(a)))
    B, Hq, Hkv, Sq, Sk, D = 8, 32, 32, 608, 1024, 128
    return {
        "q": _w((lambda *s: torch.randn(*s, dtype=torch.bfloat16) * 0.8)(B, Hq, Sq, D)),
        "k": _w((lambda *s: torch.randn(*s, dtype=torch.bfloat16) * 0.8)(B, Hkv, Sk, D)),
        "v": _w((lambda *s: torch.randn(*s, dtype=torch.bfloat16) * 0.05)(B, Hkv, Sk, D)),
    }

def reference(q, k, v):
    B, Hq, Sq, D = q.shape
    Hkv = k.shape[1]
    rep = Hq // Hkv
    k = (lambda x, n, axis: torch.repeat_interleave(x, n, dim=axis))(k, rep, axis=1)
    v = (lambda x, n, axis: torch.repeat_interleave(x, n, dim=axis))(v, rep, axis=1)
    scale = D ** -0.5
    scores = torch.einsum("bhqd,bhkd->bhqk", q, k) * scale
    p = _softmax(scores, axis=-1)
    return torch.einsum("bhqk,bhkd->bhqd", p, v)
```

```python
import sys, math

KNAME = "standalone__gqa_softmax__near_ridge_kernel"
NS = 8
VREG = 65536
FLAGREG = 131072
LDS_BYTES = 131072 + 256
NT = 32
SCALE_LOG2E = (128 ** -0.5) * math.log2(math.e)

V_TID = 0
V_DMA_A, V_DMA_B = 1, 2
V_KADDR = 4
V_VADDR = 8
V_QOFF = 16
V_OOFF = 17
V_L = 18
V_M = 24
V_FRAG = 44
NF = 4
V_S = 64
V_Q = 144
V_T = 224

S_Q, S_K, S_V, S_O = 12, 16, 20, 24
S_HEAD, S_HALF, S_KVBASE, S_WAVE = 28, 29, 30, 31
S_QBASE = 32
S_KVOFF = 33
S_W2048 = 34
S_LOOP = 35
S_C0 = 36
S_TMP = 38
S_THR = 40
S_FLAG = 42


def f2u(f):
    import struct
    return struct.unpack("<I", struct.pack("<f", f))[0]


class Ins:
    __slots__ = ("txt", "kind", "w", "r", "c", "cost")

    def __init__(self, txt, kind, w=(), r=(), c=(), cost=4):
        self.txt, self.kind, self.w, self.r, self.c, self.cost = txt, kind, set(w), set(r), set(c), cost


def vr(base, n):
    return [("v", base + i) for i in range(n)]


def ar(base, n):
    return [("a", base + i) for i in range(n)]


def rng(p, base, n):
    return f"{p}[{base}:{base+n-1}]" if n > 1 else f"{p}{base}"


class Em:
    def __init__(self):
        self.ins = []

    def raw(self, txt, kind="other", w=(), r=(), c=(), cost=4):
        self.ins.append(Ins(txt, kind, w, r, c, cost))

    def label(self, name):
        self.ins.append(Ins(name + ":", "label", cost=0))

    def extend(self, lst):
        self.ins.extend(lst)


def mfma(dp, d, ap, a, bp, b, cp, c):
    cs = "0" if cp is None else rng(cp, c, 4)
    txt = f"v_mfma_f32_16x16x32_bf16 {rng(dp,d,4)}, {rng(ap,a,4)}, {rng(bp,b,4)}, {cs}"
    w = [(dp, d + i) for i in range(4)]
    r = [(ap, a + i) for i in range(4)] + [(bp, b + i) for i in range(4)]
    cc = [] if cp is None else [(cp, c + i) for i in range(4)]
    return Ins(txt, "mfma", w, r, cc, cost=8)


def valu(txt, w, r, cost=4, kind="valu"):
    return Ins(txt, kind, w, r, cost=cost)


def v_exp(d, s):
    return Ins(f"v_exp_f32 v{d}, v{s}", "trans", vr(d, 1), vr(s, 1), cost=8)


def v_add(d, a, b):
    return valu(f"v_add_f32 v{d}, v{a}, v{b}", vr(d, 1), vr(a, 1) + vr(b, 1))


def v_cvt(d, a, b):
    return valu(f"v_cvt_pk_bf16_f32 v{d}, v{a}, v{b}", vr(d, 1), vr(a, 1) + vr(b, 1))


def ds_k(frag, ds, kb, slot):
    d = V_FRAG + frag * 4
    off = slot * 8192 + kb * 4096
    return Ins(f"ds_read_b128 v[{d}:{d+3}], v{V_KADDR+ds} offset:{off}", "lds", vr(d, 4), vr(V_KADDR + ds, 1))


def ds_v(frag, db, hh, slot):
    d = V_FRAG + frag * 4 + hh * 2
    off = slot * 8192 + hh * 4096
    return Ins(f"ds_read_b64_tr_b16 v[{d}:{d+1}], v{V_VADDR+db} offset:{off}", "lds", vr(d, 2), vr(V_VADDR + db, 1))


def salu(txt):
    return Ins(txt, "salu")


def waitl(n):
    return Ins(f"s_waitcnt lgkmcnt({n})", "wait")


def waitv(n):
    return Ins(f"s_waitcnt vmcnt({n})", "wait")


def nop(n):
    return Ins(f"s_nop {n}", "nop", cost=4 * (n + 1))


def S(p, b):
    return V_S + p * 40 + b * 8


def Q(b, ds):
    return V_Q + b * 16 + ds * 4


def O(b, db):
    return b * 32 + db * 4


def M(b):
    return V_M + b * 4


def dma_group(slot):
    out = []
    out.append(salu(f"s_add_u32 m0, s{S_W2048}, {slot*8192}"))
    out.append(Ins(f"buffer_load_dwordx4 v{V_DMA_A}, s[{S_K}:{S_K+3}], s{S_KVOFF} offen lds", "vmem", (), vr(V_DMA_A, 1), cost=8))
    out.append(Ins(f"buffer_load_dwordx4 v{V_DMA_B}, s[{S_K}:{S_K+3}], s{S_KVOFF} offen offset:1024 lds", "vmem", (), vr(V_DMA_B, 1), cost=8))
    out.append(salu(f"s_add_u32 m0, s{S_W2048}, {VREG + slot*8192}"))
    out.append(Ins(f"buffer_load_dwordx4 v{V_DMA_A}, s[{S_V}:{S_V+3}], s{S_KVOFF} offen lds", "vmem", (), vr(V_DMA_A, 1), cost=8))
    out.append(Ins(f"buffer_load_dwordx4 v{V_DMA_B}, s[{S_V}:{S_V+3}], s{S_KVOFF} offen offset:1024 lds", "vmem", (), vr(V_DMA_B, 1), cost=8))
    out.append(salu(f"s_add_u32 s{S_KVOFF}, s{S_KVOFF}, 8192"))
    return out


def fix_m0_hazard(lst):
    out = []
    for k, x in enumerate(lst):
        out.append(x)
        if x.kind == "salu" and " m0," in x.txt and k + 1 < len(lst) and lst[k + 1].kind == "vmem":
            out.append(nop(0))
    return out


def softmax_ops(p, c):
    ops = []
    for b in range(c):
        s = S(p, b)
        l = V_L + b
        seq = [v_exp(s + 0, s + 0), v_exp(s + 1, s + 1), v_add(l, l, s + 0), v_exp(s + 2, s + 2), v_add(l, l, s + 1),
               v_exp(s + 3, s + 3), v_add(l, l, s + 2), v_cvt(s + 0, s + 0, s + 1), v_exp(s + 4, s + 4), v_add(l, l, s + 3),
               v_exp(s + 5, s + 5), v_add(l, l, s + 4), v_cvt(s + 1, s + 2, s + 3), v_exp(s + 6, s + 6), v_add(l, l, s + 5),
               v_exp(s + 7, s + 7), v_add(l, l, s + 6), v_cvt(s + 2, s + 4, s + 5), v_add(l, l, s + 7),
               v_cvt(s + 3, s + 6, s + 7)]
        ops += seq
    return ops


class FragState:
    def __init__(self):
        self.next = 0


def iteration(j, c, do_pv=True, do_qk=True, do_sm=True, do_dma=True, vm_wait=16, pre_v=True, fs=None, look=2):
    p = j % 2
    slotV = j % NS
    slotK = (j + 2) % NS
    frs = []
    if do_pv:
        frs += [("v", db, slotV) for db in range(8)]
    if do_qk:
        frs += [("k", kb, ds, slotK) for kb in range(2) for ds in range(4)]
    nxt = []
    if pre_v:
        nxt = [("v", db, (j + 1) % NS) for db in range(look)]
    allf = frs + nxt
    base = fs.next

    def reads(n):
        f = allf[n]
        slot = (base + n) % NF
        if f[0] == "v":
            return [ds_v(slot, f[1], 0, f[2]), ds_v(slot, f[1], 1, f[2])]
        return [ds_k(slot, f[2], f[1], f[3])]

    def nreads(n):
        return 2 if allf[n][0] == "v" else 1

    vops = softmax_ops((j + 1) % 2, c) if do_sm else []
    nm = len(frs) * c
    out = []
    vi = 0
    total_v_cost = sum(x.cost for x in vops)
    g0, g1 = 2, max(3, nm - 3)
    done_cost = 0
    bar_at = 8 * c + 2 if do_qk else None
    if not do_qk:
        bar_at = None
    m = 0
    for n, f in enumerate(frs):
        if n + look < len(allf):
            out += reads(n + look)
        after = sum(nreads(k) for k in range(n + 1, min(n + look, len(allf) - 1) + 1))
        out.append(waitl(after))
        slot = V_FRAG + ((base + n) % NF) * 4
        for b in range(c):
            if f[0] == "v":
                db = f[1]
                out.append(mfma("a", O(b, db), "v", slot, "v", S(p, b), "a", O(b, db)))
            else:
                kb, ds = f[1], f[2]
                d = S(p, b) + kb * 4
                if ds == 0:
                    out.append(mfma("v", d, "v", slot, "v", Q(b, ds), "v", M(b)))
                else:
                    out.append(mfma("v", d, "v", slot, "v", Q(b, ds), "v", d))
            m += 1
            if m >= g0 and vi < len(vops):
                target = total_v_cost * min(1.0, (m - g0 + 1) / (g1 - g0 + 1))
                while vi < len(vops) and done_cost + vops[vi].cost / 2 <= target:
                    out.append(vops[vi]); done_cost += vops[vi].cost; vi += 1
            if bar_at is not None and m == bar_at:
                out.append(waitv(vm_wait))
                out.append(Ins("s_barrier", "barrier"))
                if do_dma:
                    out += fix_m0_hazard(dma_group(j % NS))
    while vi < len(vops):
        out.append(vops[vi]); vi += 1
    fs.next = (base + len(frs)) % NF
    return out


def check_hazards(ins, name):
    real = [x for x in ins if x.kind != "label"]
    lastm = {}
    lastv = {}
    lastt = {}
    lastc = {}
    pos = 0
    errs = 0
    for x in real:
        states = 1
        if x.kind == "nop":
            states = int(x.txt.split()[1]) + 1
        if x.kind in ("valu", "trans"):
            for rg in x.r | x.w:
                if rg in lastm and pos - lastm[rg] - 1 < 8:
                    print(f"[{name}] HAZARD mfma->valu {rg} dist {pos-lastm[rg]-1}: {x.txt}"); errs += 1
            for rg in x.w:
                if rg in lastc and pos - lastc[rg] - 1 < 3:
                    print(f"[{name}] HAZARD mfmaC->valu write {rg}: {x.txt}"); errs += 1
            if x.kind == "valu":
                for rg in x.r:
                    if rg in lastt and pos - lastt[rg] - 1 < 1:
                        print(f"[{name}] HAZARD trans->valu {rg}: {x.txt}"); errs += 1
            if "permlane" in x.txt:
                for rg in x.r | x.w:
                    if rg in lastv and pos - lastv[rg] - 1 < 2:
                        print(f"[{name}] HAZARD valu->permlane {rg}: {x.txt}"); errs += 1
        if x.kind in ("vmem", "lds"):
            for rg in x.r:
                if rg in lastm and pos - lastm[rg] - 1 < 8:
                    print(f"[{name}] HAZARD mfma->mem {rg}: {x.txt}"); errs += 1
            for rg in x.w:
                if rg in lastm and pos - lastm[rg] - 1 < 8:
                    print(f"[{name}] HAZARD mfma->load dst {rg}: {x.txt}"); errs += 1
        if x.kind == "mfma":
            for rg in x.r | x.c:
                if rg in lastv and pos - lastv[rg] - 1 < 2:
                    print(f"[{name}] HAZARD valu->mfma {rg} dist {pos-lastv[rg]-1}: {x.txt}"); errs += 1
            for rg in x.r:
                if rg in lastm and pos - lastm[rg] - 1 < 8:
                    print(f"[{name}] HAZARD mfma->mfma AB {rg}: {x.txt}"); errs += 1
            if x.c and x.c != x.w:
                for rg in x.c:
                    if rg in lastm and pos - lastm[rg] - 1 < 6:
                        print(f"[{name}] HAZARD mfma->mfma C(other) {rg}: {x.txt}"); errs += 1
        if x.kind == "mfma":
            for rg in x.w:
                lastm[rg] = pos; lastv.pop(rg, None); lastt.pop(rg, None)
            for rg in x.c:
                lastc[rg] = pos
        elif x.kind in ("valu", "trans"):
            for rg in x.w:
                lastv[rg] = pos; lastm.pop(rg, None)
                if x.kind == "trans":
                    lastt[rg] = pos
                else:
                    lastt.pop(rg, None)
        elif x.kind in ("vmem", "lds"):
            for rg in x.w:
                lastm.pop(rg, None); lastv.pop(rg, None); lastt.pop(rg, None)
        pos += states
    return errs


def wave_program(c, tag):
    e = Em()
    errs = 0
    e.label(f"L_{tag}_start")
    pro = []
    pro += fix_m0_hazard(dma_group(0))
    for b in range(c):
        pro.append(salu(f"s_add_u32 s{S_TMP}, s{S_QBASE}, {b*4096}"))
        for ds in range(4):
            d = Q(b, ds)
            pro.append(Ins(f"buffer_load_dwordx4 v[{d}:{d+3}], v{V_QOFF}, s[{S_Q}:{S_Q+3}], s{S_TMP} offen offset:{ds*64}", "vmem", vr(d, 4), vr(V_QOFF, 1)))
    for g in range(1, NS):
        pro += fix_m0_hazard(dma_group(g))
    for i in range(c * 32):
        pro.append(valu(f"v_accvgpr_write_b32 a{i}, 0", [("a", i)], []))
    for b in range(c):
        pro.append(valu(f"v_mov_b32 v{V_L+b}, 0", vr(V_L + b, 1), []))
    nafter = 4 * (NS - 1)
    for b in range(c):
        pro.append(waitv(nafter + 4 * (c - 1 - b)))
        for r in range(16):
            x = V_Q + b * 16 + r
            t = V_T + (r % 4) * 2
            pro.append(valu(f"v_lshlrev_b32 v{t}, 16, v{x}", vr(t, 1), vr(x, 1)))
            pro.append(valu(f"v_and_b32 v{t+1}, 0xffff0000, v{x}", vr(t + 1, 1), vr(x, 1)))
            pro.append(valu(f"v_pk_mul_f32 v[{t}:{t+1}], v[{t}:{t+1}], s[{S_C0}:{S_C0+1}]", vr(t, 2), vr(t, 2)))
            pro.append(v_cvt(x, t, t + 1))
    pro.append(waitv(4 * (NS - 3)))
    pro.append(Ins("s_barrier", "barrier"))
    fs = FragState()

    def qk_plain(tile, p, cinit):
        o = []
        seq = [(kb, ds) for kb in range(2) for ds in range(4)]
        slots = []
        for n, (kb, ds) in enumerate(seq):
            if n == 0:
                for k in range(2):
                    o.append(ds_k((fs.next + k) % NF, seq[k][1], seq[k][0], tile % NS))
            if n + 2 < 8:
                o.append(ds_k((fs.next + n + 2) % NF, seq[n + 2][1], seq[n + 2][0], tile % NS))
            o.append(waitl(min(2, 7 - n)))
            sl = V_FRAG + ((fs.next + n) % NF) * 4
            for b in range(c):
                d = S(p, b) + kb * 4
                if ds == 0:
                    o.append(mfma("v", d, "v", sl, "v", Q(b, ds), None if cinit is None else "v", M(b)))
                else:
                    o.append(mfma("v", d, "v", sl, "v", Q(b, ds), "v", d))
        fs.next = (fs.next + 8) % NF
        return o
    pro += qk_plain(0, 0, None)
    pro.append(nop(7))
    for b in range(c):
        s = S(0, b)
        t, t2 = V_T + 8 + 2 * b, V_T + 9 + 2 * b
        pro.append(valu(f"v_max3_f32 v{t}, v{s}, v{s+1}, v{s+2}", vr(t, 1), vr(s, 3)))
        pro.append(valu(f"v_max3_f32 v{t2}, v{s+3}, v{s+4}, v{s+5}", vr(t2, 1), vr(s + 3, 3)))
        pro.append(valu(f"v_max3_f32 v{t}, v{t}, v{s+6}, v{s+7}", vr(t, 1), vr(t, 1) + vr(s + 6, 2)))
        pro.append(valu(f"v_max_f32 v{t}, v{t}, v{t2}", vr(t, 1), vr(t, 2)))
        pro.append(valu(f"v_mov_b32 v{t2}, v{t}", vr(t2, 1), vr(t, 1)))
    pro.append(nop(1))
    for b in range(c):
        t, t2 = V_T + 8 + 2 * b, V_T + 9 + 2 * b
        pro.append(valu(f"v_permlane16_swap_b32 v{t}, v{t2}", vr(t, 2), vr(t, 2)))
    for b in range(c):
        t, t2 = V_T + 8 + 2 * b, V_T + 9 + 2 * b
        pro.append(valu(f"v_max_f32 v{t}, v{t}, v{t2}", vr(t, 1), vr(t, 2)))
        pro.append(valu(f"v_mov_b32 v{t2}, v{t}", vr(t2, 1), vr(t, 1)))
    pro.append(nop(1))
    for b in range(c):
        t, t2 = V_T + 8 + 2 * b, V_T + 9 + 2 * b
        pro.append(valu(f"v_permlane32_swap_b32 v{t}, v{t2}", vr(t, 2), vr(t, 2)))
    for b in range(c):
        t, t2 = V_T + 8 + 2 * b, V_T + 9 + 2 * b
        pro.append(valu(f"v_max_f32 v{t}, v{t}, v{t2}", vr(t, 1), vr(t, 2)))
        for r in range(4):
            pro.append(valu(f"v_sub_f32 v{M(b)+r}, 0, v{t}", vr(M(b) + r, 1), vr(t, 1)))
        for r in range(8):
            s = S(0, b) + r
            pro.append(valu(f"v_sub_f32 v{s}, v{s}, v{t}", vr(s, 1), vr(s, 1) + vr(t, 1)))
    pro += qk_plain(1, 1, True)
    pro += softmax_ops(0, c)
    look = 2
    for k in range(look):
        sl = (fs.next + k) % NF
        pro += [ds_v(sl, k, 0, 0), ds_v(sl, k, 1, 0)]
    pro.append(salu(f"s_mov_b32 s{S_LOOP}, 0"))
    e.extend(pro)
    body = []
    st = fs.next
    for j in range(8):
        body += iteration(j, c, fs=fs, look=look)
    assert fs.next == st, (fs.next, st)
    e.label(f"L_{tag}_loop")
    e.extend(body)
    e.raw(f"s_add_u32 s{S_LOOP}, s{S_LOOP}, 1", "salu")
    e.raw(f"s_cmp_lt_u32 s{S_LOOP}, 3", "salu")
    e.raw(f"s_cbranch_scc1 L_{tag}_loop", "salu")
    tail = []
    for j in range(24, 32):
        need = min(j + 3, 31)
        vmw = 4 * (31 - need)
        tail += iteration(j, c, do_qk=(j + 2 < NT), do_sm=(j + 1 < NT), do_dma=False, vm_wait=vmw,
                          pre_v=(j + 1 < NT), fs=fs, look=look)
    e.extend(tail)
    epi = []
    epi.append(nop(7))
    for b in range(c):
        t, t2 = V_T + 8 + 2 * b, V_T + 9 + 2 * b
        epi.append(valu(f"v_mov_b32 v{t}, v{V_L+b}", vr(t, 1), vr(V_L + b, 1)))
        epi.append(valu(f"v_mov_b32 v{t2}, v{V_L+b}", vr(t2, 1), vr(V_L + b, 1)))
    epi.append(nop(1))
    for b in range(c):
        t, t2 = V_T + 8 + 2 * b, V_T + 9 + 2 * b
        epi.append(valu(f"v_permlane16_swap_b32 v{t}, v{t2}", vr(t, 2), vr(t, 2)))
    for b in range(c):
        t, t2 = V_T + 8 + 2 * b, V_T + 9 + 2 * b
        epi.append(v_add(t, t, t2))
        epi.append(valu(f"v_mov_b32 v{t2}, v{t}", vr(t2, 1), vr(t, 1)))
    epi.append(nop(1))
    for b in range(c):
        t, t2 = V_T + 8 + 2 * b, V_T + 9 + 2 * b
        epi.append(valu(f"v_permlane32_swap_b32 v{t}, v{t2}", vr(t, 2), vr(t, 2)))
    for b in range(c):
        t, t2 = V_T + 8 + 2 * b, V_T + 9 + 2 * b
        epi.append(v_add(t, t, t2))
        epi.append(Ins(f"v_rcp_f32 v{t2}, v{t}", "trans", vr(t2, 1), vr(t, 1), cost=8))
    k = 0
    for b in range(c):
        rinv = V_T + 9 + 2 * b
        epi.append(salu(f"s_add_u32 s{S_TMP}, s{S_QBASE}, {b*4096}"))
        for db in range(0, 8, 2):
            x = V_S + (k % 4) * 16
            k += 1
            for r in range(8):
                epi.append(valu(f"v_accvgpr_read_b32 v{x+r}, a{O(b,db)+r}", vr(x + r, 1), [("a", O(b, db) + r)]))
            for r in range(8):
                epi.append(valu(f"v_mul_f32 v{x+r}, v{x+r}, v{rinv}", vr(x + r, 1), vr(x + r, 1) + vr(rinv, 1)))
            for r in range(4):
                epi.append(v_cvt(x + 8 + r, x + 2 * r, x + 2 * r + 1))
            epi.append(nop(1))
            epi.append(valu(f"v_permlane16_swap_b32 v{x+8}, v{x+10}", vr(x + 8, 1) + vr(x + 10, 1), vr(x + 8, 1) + vr(x + 10, 1)))
            epi.append(valu(f"v_permlane16_swap_b32 v{x+9}, v{x+11}", vr(x + 9, 1) + vr(x + 11, 1), vr(x + 9, 1) + vr(x + 11, 1)))
            epi.append(Ins(f"buffer_store_dwordx4 v[{x+8}:{x+11}], v{V_OOFF}, s[{S_O}:{S_O+3}], s{S_TMP} offen offset:{db*32}", "vmem", (), vr(x + 8, 4) + vr(V_OOFF, 1)))
    epi.append(Ins("s_endpgm", "other"))
    e.extend(epi)
    errs += check_hazards(pro + body + body + tail + epi, tag)
    return e.ins, errs


def main():
    out = []
    out.append(f"; @launch grid=(512,1,1) block=(256,1,1) lds={LDS_BYTES}")
    out.append('.amdgcn_target "amdgcn-amd-amdhsa--gfx950"')
    out.append(".text")
    out.append(f".globl {KNAME}")
    out.append(".p2align 8")
    out.append(f".type {KNAME},@function")
    out.append(f"{KNAME}:")
    cu = f2u(SCALE_LOG2E)
    setup = f"""
    s_cmp_ge_u32 s2, 512
    s_cbranch_scc1 L_exit
    s_load_dwordx4 s[4:7], s[0:1], 0
    s_load_dwordx4 s[8:11], s[0:1], 16
    s_and_b32 s{S_TMP}, s2, 7
    s_lshr_b32 s{S_TMP+1}, s2, 3
    s_and_b32 s{S_HALF}, s{S_TMP+1}, 1
    s_lshr_b32 s{S_TMP+1}, s{S_TMP+1}, 1
    s_lshl_b32 s{S_TMP+1}, s{S_TMP+1}, 3
    s_add_u32 s{S_HEAD}, s{S_TMP+1}, s{S_TMP}
    s_lshl_b32 s{S_KVOFF}, s{S_HEAD}, 18
    v_lshrrev_b32 v{V_T}, 6, v0
    v_and_b32 v{V_T+1}, 63, v0            ; lane
    v_readfirstlane_b32 s{S_WAVE}, v{V_T}
    v_lshrrev_b32 v{V_T+2}, 4, v{V_T+1}   ; g
    v_and_b32 v{V_T+3}, 15, v{V_T+1}      ; i
    s_mul_i32 s{S_QBASE}, s{S_HEAD}, 155648
    s_mul_i32 s{S_TMP}, s{S_HALF}, 77824
    s_add_u32 s{S_QBASE}, s{S_QBASE}, s{S_TMP}
    s_mul_i32 s{S_TMP}, s{S_WAVE}, 20480
    s_add_u32 s{S_QBASE}, s{S_QBASE}, s{S_TMP}
    s_lshl_b32 s{S_W2048}, s{S_WAVE}, 11
    s_mov_b32 s{S_C0}, 0x{cu:08x}
    s_mov_b32 s{S_C0+1}, 0x{cu:08x}
    ; Q voffset = i*256 + g*16
    v_lshlrev_b32 v{V_QOFF}, 8, v{V_T+3}
    v_lshl_add_u32 v{V_QOFF}, v{V_T+2}, 4, v{V_QOFF}
    ; O voffset = i*256 + (g&1)*32 + (g>>1)*16
    v_lshlrev_b32 v{V_OOFF}, 8, v{V_T+3}
    v_and_b32 v{V_T+4}, 1, v{V_T+2}
    v_lshl_add_u32 v{V_OOFF}, v{V_T+4}, 5, v{V_OOFF}
    v_lshrrev_b32 v{V_T+4}, 1, v{V_T+2}
    v_lshl_add_u32 v{V_OOFF}, v{V_T+4}, 4, v{V_OOFF}
    v_lshlrev_b32 v{V_T+4}, 1, v{V_T+2}
    v_xor_b32 v{V_T+5}, v{V_T+3}, v{V_T+4}
    v_lshlrev_b32 v{V_T+5}, 4, v{V_T+5}
    v_lshl_add_u32 v{V_T+5}, v{V_T+2}, 8, v{V_T+5}
    v_add_u32 v{V_DMA_A}, s{S_W2048}, v{V_T+5}
    v_xor_b32 v{V_DMA_B}, 0x80, v{V_DMA_A}
    v_and_b32 v{V_T+4}, 7, v{V_T+3}
    v_lshlrev_b32 v{V_T+4}, 1, v{V_T+4}
    v_lshlrev_b32 v{V_T+6}, 8, v{V_T+3}
"""
    for ds in range(4):
        setup += f"""    v_add_u32 v{V_T+5}, {4*ds}, v{V_T+2}
    v_xor_b32 v{V_T+5}, v{V_T+5}, v{V_T+4}
    v_lshl_add_u32 v{V_KADDR+ds}, v{V_T+5}, 4, v{V_T+6}
"""
    setup += f"""    ; V read addr(db) = VREG + (4g+r)*256 + ((db^x)*32) + cc*8 ; r=(lane>>2)&3, cc=lane&3, x=4(g&1)+r
    v_lshrrev_b32 v{V_T+4}, 2, v{V_T+1}
    v_and_b32 v{V_T+4}, 3, v{V_T+4}          ; r
    v_and_b32 v{V_T+5}, 3, v{V_T+1}          ; cc
    v_lshl_add_u32 v{V_T+6}, v{V_T+2}, 2, v{V_T+4}   ; 4g+r
    v_and_b32 v{V_T+7}, 7, v{V_T+6}          ; x
    v_lshlrev_b32 v{V_T+6}, 8, v{V_T+6}
    v_lshl_add_u32 v{V_T+6}, v{V_T+5}, 3, v{V_T+6}
    v_add_u32 v{V_T+6}, {VREG}, v{V_T+6}
"""
    for db in range(8):
        setup += f"""    v_xor_b32 v{V_T+5}, {db}, v{V_T+7}
    v_lshl_add_u32 v{V_VADDR+db}, v{V_T+5}, 5, v{V_T+6}
"""
    setup += f"""    s_waitcnt lgkmcnt(0)
    s_mov_b32 s{S_Q}, s4
    s_mov_b32 s{S_Q+1}, s5
    s_mov_b32 s{S_Q+2}, 39845888
    s_mov_b32 s{S_Q+3}, 0x00020000
    s_mov_b32 s{S_K}, s6
    s_mov_b32 s{S_K+1}, s7
    s_mov_b32 s{S_K+2}, 67108864
    s_mov_b32 s{S_K+3}, 0x00020000
    s_mov_b32 s{S_V}, s8
    s_mov_b32 s{S_V+1}, s9
    s_mov_b32 s{S_V+2}, 67108864
    s_mov_b32 s{S_V+3}, 0x00020000
    s_mov_b32 s{S_O}, s10
    s_mov_b32 s{S_O+1}, s11
    s_mov_b32 s{S_O+2}, 39845888
    s_mov_b32 s{S_O+3}, 0x00020000
    s_cmp_eq_u32 s{S_WAVE}, 3
    s_cbranch_scc1 L_c4_start
"""
    out.append(setup)
    errs = 0
    for c, tag in ((5, "c5"), (4, "c4")):
        ins, e = wave_program(c, tag)
        errs += e
        for x in ins:
            out.append(x.txt if x.kind == "label" else "    " + x.txt)
    out.append("L_exit:")
    out.append("    s_endpgm")
    out.append(f""".section .rodata,"a"
.p2align 6
.amdhsa_kernel {KNAME}
  .amdhsa_next_free_vgpr 512
  .amdhsa_next_free_sgpr 102
  .amdhsa_accum_offset 256
  .amdhsa_group_segment_fixed_size 0
  .amdhsa_kernarg_size 48
  .amdhsa_user_sgpr_count 2
  .amdhsa_user_sgpr_kernarg_segment_ptr 1
  .amdhsa_system_sgpr_workgroup_id_x 1
.end_amdhsa_kernel""")
    dst = sys.argv[1] if len(sys.argv) > 1 else "attn.s"
    open(dst, "w").write("\n".join(out) + "\n")
    print("hazard errors:", errs, "->", dst)


if __name__ == "__main__":
    main()
```

```python
import sys, math, os
XF = set(os.environ.get("XF", "").split(","))

KNAME = "standalone__gqa_softmax__near_ridge_kernel"
NS = 8
VREG = 65536
FLAGREG = 131072
LDS_BYTES = 131072 + 256
NT = 32
SCALE_LOG2E = (128 ** -0.5) * math.log2(math.e)
THR = 2.0 ** 30
KVMOD = "" if "kvdef" in XF else " nt"
QMOD = " nt" if "qnt" in XF else ""
OMOD = " nt" if "ont" in XF else ""

NWAVES = 4
CMAX = 5
VARIANTS = ((5, "c5"), (4, "c4"))
GOPS = 4
NF = 8
V_DMA_A, V_DMA_B = 1, 2
V_ST0, V_ST1 = 3, 247
V_KADDR = 4
V_VADDR = 8
V_QOFF = 16
V_OOFF = 17
V_L4 = 20
V_M = 24
V_FRAG = 44
V_S = 76
V_QR = 156
V_T = 236
V_ONE = 248
V_Z = 252
V_FLAGA = 18
V_FLAGB = 19
V_RI = V_QR + 64
A_Q = 160

S_Q, S_K, S_V, S_O = 12, 16, 20, 24
S_HEAD, S_HALF, S_KVBASE, S_WAVE = 28, 29, 30, 31
S_QBASE = 32
S_KVOFF = 33
S_W2048 = 34
S_LOOP = 35
S_C0 = 36
S_TMP = 38
S_THR = 40
S_FLAG = 42
S_QNEXT = 44
S_KVNEXT = 45
S_BLK = 46
S_FL2 = 48
S_CODE = 50
S_EXA = 52
S_EXB = 54


def f2u(f):
    import struct
    return struct.unpack("<I", struct.pack("<f", f))[0]


class Ins:
    __slots__ = ("txt", "kind", "w", "r", "c", "cost", "passes")

    def __init__(self, txt, kind, w=(), r=(), c=(), cost=4, passes=4):
        self.txt, self.kind, self.w, self.r, self.c, self.cost = txt, kind, set(w), set(r), set(c), cost
        self.passes = passes


def label(name):
    return Ins(name + ":", "label", cost=0)


def vr(base, n):
    return [("v", base + i) for i in range(n)]


def ar(base, n):
    return [("a", base + i) for i in range(n)]


def rng(p, base, n):
    return f"{p}[{base}:{base+n-1}]" if n > 1 else f"{p}{base}"


def mfma(dp, d, ap, a, bp, b, cp, c):
    cs = "0" if cp is None else rng(cp, c, 4)
    txt = f"v_mfma_f32_16x16x32_bf16 {rng(dp,d,4)}, {rng(ap,a,4)}, {rng(bp,b,4)}, {cs}"
    w = [(dp, d + i) for i in range(4)]
    r = [(ap, a + i) for i in range(4)] + [(bp, b + i) for i in range(4)]
    cc = [] if cp is None else [(cp, c + i) for i in range(4)]
    return Ins(txt, "mfma", w, r, cc, cost=8)


def mfma_zero16(a):
    txt = f"v_mfma_f32_32x32x16_bf16 a[{a}:{a+15}], v[{V_Z}:{V_Z+3}], v[{V_Z}:{V_Z+3}], 0"
    return Ins(txt, "mfma", ar(a, 16), vr(V_Z, 4), (), cost=8, passes=8)


def valu(txt, w, r, cost=4, kind="valu"):
    return Ins(txt, kind, w, r, cost=cost)


def v_exp(d, s):
    return Ins(f"v_exp_f32 v{d}, v{s}", "trans", vr(d, 1), vr(s, 1), cost=8)


def v_add(d, a, b):
    return valu(f"v_add_f32 v{d}, v{a}, v{b}", vr(d, 1), vr(a, 1) + vr(b, 1))


def v_sub(d, a, b):
    return valu(f"v_sub_f32 v{d}, v{a}, v{b}", vr(d, 1), vr(a, 1) + vr(b, 1))


def v_mul(d, a, b):
    return valu(f"v_mul_f32 v{d}, v{a}, v{b}", vr(d, 1), vr(a, 1) + vr(b, 1))


def v_max(d, a, b):
    return valu(f"v_max_f32 v{d}, v{a}, v{b}", vr(d, 1), vr(a, 1) + vr(b, 1))


def v_max3(d, a, b, c):
    return valu(f"v_max3_f32 v{d}, v{a}, v{b}, v{c}", vr(d, 1), vr(a, 1) + vr(b, 1) + vr(c, 1))


def v_mov(d, s):
    return valu(f"v_mov_b32 v{d}, v{s}", vr(d, 1), vr(s, 1))


def v_cvt(d, a, b):
    return valu(f"v_cvt_pk_bf16_f32 v{d}, v{a}, v{b}", vr(d, 1), vr(a, 1) + vr(b, 1))


def acc_rd(d, a):
    return valu(f"v_accvgpr_read_b32 v{d}, a{a}", vr(d, 1), ar(a, 1))


def acc_wr(a, s):
    return valu(f"v_accvgpr_write_b32 a{a}, v{s}", ar(a, 1), vr(s, 1))


def swap16(a, b):
    return valu(f"v_permlane16_swap_b32 v{a}, v{b}", vr(a, 1) + vr(b, 1), vr(a, 1) + vr(b, 1))


def swap32(a, b):
    return valu(f"v_permlane32_swap_b32 v{a}, v{b}", vr(a, 1) + vr(b, 1), vr(a, 1) + vr(b, 1))


def ds_k(frag, ds, kb, slot):
    d = V_FRAG + frag * 4
    off = slot * 8192 + kb * 4096
    return Ins(f"ds_read_b128 v[{d}:{d+3}], v{V_KADDR+ds} offset:{off}", "lds", vr(d, 4), vr(V_KADDR + ds, 1))


def ds_v(frag, db, hh, slot):
    d = V_FRAG + frag * 4 + hh * 2
    off = slot * 8192 + hh * 4096
    return Ins(f"ds_read_b64_tr_b16 v[{d}:{d+1}], v{V_VADDR+db} offset:{off}", "lds", vr(d, 2), vr(V_VADDR + db, 1))


def salu(txt):
    return Ins(txt, "salu")


def waitl(n):
    return Ins(f"s_waitcnt lgkmcnt({n})", "wait")


def waitv(n):
    assert 0 <= n <= 63
    return Ins(f"s_waitcnt vmcnt({n})", "wait")


def nop(n):
    return Ins(f"s_nop {n}", "nop", cost=4 * (n + 1))


def barrier():
    return Ins("s_barrier", "barrier")


def S(p, b):
    return V_S + p * 40 + b * 8


def QA(b, ds):
    return A_Q + b * 16 + ds * 4


def O(b, db):
    return b * 32 + db * 4


def LQ(b):
    return ("a", 240 + 4 * b) if b < 4 else ("v", V_L4)


def lmfma(b, p):
    lp, l = LQ(b)
    return mfma(lp, l, "v", V_ONE, "v", S(p, b), lp, l)


def M(b):
    return V_M + b * 4


def T(b):
    return (V_T + 2 * b, V_T + 2 * b + 1)


def dma_group(slot):
    out = []
    for reg, srd in ((0, S_K), (VREG, S_V)):
        out.append(salu(f"s_add_u32 m0, s{S_W2048}, {reg + slot*8192}"))
        out.append(Ins(f"buffer_load_dwordx4 v{V_DMA_A}, s[{srd}:{srd+3}], s{S_KVOFF} offen{KVMOD} lds", "vmem", (), vr(V_DMA_A, 1), cost=24))
        out.append(Ins(f"buffer_load_dwordx4 v{V_DMA_B}, s[{srd}:{srd+3}], s{S_KVOFF} offen offset:1024{KVMOD} lds", "vmem", (), vr(V_DMA_B, 1), cost=24))
    out.append(salu(f"s_add_u32 s{S_KVOFF}, s{S_KVOFF}, 8192"))
    return out


def fix_m0(lst):
    out = []
    for k, x in enumerate(lst):
        out.append(x)
        if x.kind == "salu" and " m0," in x.txt and k + 1 < len(lst) and lst[k + 1].kind == "vmem":
            out.append(nop(0))
    return out


def split_vm_units(lst):
    units, cur = [], []
    for x in lst:
        cur.append(x)
        if x.kind == "vmem":
            units.append(cur); cur = []
    if cur:
        units[-1] += cur
    return units


def flat_fix(ops):
    out = []
    for x in ops:
        if out and out[-1].kind == "trans" and x.kind == "valu" and (out[-1].w & x.r):
            out.append(nop(0))
        out.append(x)
    return out


def softmax_units(p, c):
    units = []
    for b in range(c):
        s = S(p, b)
        e = lambda i: v_exp(s + i, s + i)
        cv = lambda i: v_cvt(s + i, s + 2 * i, s + 2 * i + 1)
        units += [[e(0)], [e(1)], [e(2)], [e(3)], [e(4)], [cv(0), cv(1)], [e(5)], [e(6)], [e(7)], [nop(0) if False else cv(2)] , [cv(3)]]
    out = []
    for u in units:
        if out and len(u) == 1 and u[0].kind == "valu" and len(out[-1]) == 1 and out[-1][0].kind == "valu":
            out[-1] = out[-1] + u
        else:
            out.append(u)
    return out


def q_loads(b, sbase):
    o = [salu(f"s_add_u32 s{S_TMP}, s{sbase}, {b*4096}")]
    for ds in range(4):
        d = V_QR + b * 16 + ds * 4
        o.append(Ins(f"buffer_load_dwordx4 v[{d}:{d+3}], v{V_QOFF}, s[{S_Q}:{S_Q+3}], s{S_TMP} offen offset:{ds*64}{QMOD}", "vmem", vr(d, 4), vr(V_QOFF, 1), cost=24))
    return o


def q_load1(q, sbase):
    b, ds = q // 4, q % 4
    d = V_QR + b * 16 + ds * 4
    return [salu(f"s_add_u32 s{S_TMP}, s{sbase}, {b*4096}"),
            Ins(f"buffer_load_dwordx4 v[{d}:{d+3}], v{V_QOFF}, s[{S_Q}:{S_Q+3}], s{S_TMP} offen offset:{ds*64}{QMOD}", "vmem", vr(d, 4), vr(V_QOFF, 1), cost=24)]


def guarded_qloads(jj, tag):
    L = f"L_{tag}_q{jj}"
    if "execq" in XF:
        a = q_load1(jj, S_QNEXT)
        b = q_load1(8 + jj, S_QNEXT)
        return [a[0], salu(f"s_mov_b64 exec, s[{S_EXA}:{S_EXA+1}]"), a[1], b[0], salu(f"s_mov_b64 exec, s[{S_EXB}:{S_EXB+1}]"), b[1],
                salu("s_mov_b64 exec, -1")]
    o = [salu(f"s_cmp_eq_u32 s{S_CODE}, 1"), salu(f"s_cbranch_scc1 {L}a"),
         salu(f"s_cmp_eq_u32 s{S_CODE}, 2"), salu(f"s_cbranch_scc0 {L}e")]
    o += q_load1(8 + jj, S_QNEXT)
    o += [salu(f"s_branch {L}e"), label(f"{L}a")]
    o += q_load1(jj, S_QNEXT)
    o += [label(f"{L}e")]
    return o


def conv_units(b):
    units = []
    for r in range(16):
        x = V_QR + b * 16 + r
        t = V_T + (r % 4) * 2
        units.append([valu(f"v_lshlrev_b32 v{t}, 16, v{x}", vr(t, 1), vr(x, 1)),
                      valu(f"v_and_b32 v{t+1}, 0xffff0000, v{x}", vr(t + 1, 1), vr(x, 1))])
        units.append([valu(f"v_pk_mul_f32 v[{t}:{t+1}], v[{t}:{t+1}], s[{S_C0}:{S_C0+1}]", vr(t, 2), vr(t, 2)),
                      v_cvt(x, t, t + 1)])
    return units


def qacc_units(c):
    ops = [acc_wr(A_Q + i, V_QR + i) for i in range(16 * c)]
    return [ops[i:i + 2] for i in range(0, len(ops), 2)]


class FragState:
    def __init__(self):
        self.next = 0


def merge_units(a, b):
    out = []
    na, nb = len(a), len(b)
    ia = ib = 0
    while ia < na or ib < nb:
        if ib >= nb or (ia < na and ia * max(nb, 1) <= ib * max(na, 1)):
            out.append(a[ia]); ia += 1
        else:
            out.append(b[ib]); ib += 1
    return out


def iteration(j, c, fs, do_qk=True, do_sm=True, do_dma=True, vm_wait=4 * GOPS, pre_v=True,
              vm_extra=(), va_extra=(), pre=(), before_bar=(), after_bar=(), do_l=True, l_next=False):
    p = j % 2
    slotV = j % NS
    slotK = (j + 2) % NS
    frs = [("v", db, slotV) for db in range(8)]
    if do_qk:
        frs += [("k", kb, ds, slotK) for kb in range(2) for ds in range(4)]
    nxt = []
    if pre_v:
        nxt = [("v", db, (j + 1) % NS) for db in range(2)]
    allf = frs + nxt
    base = fs.next

    def reads(n):
        f = allf[n]
        slot = (base + n) % NF
        if f[0] == "v":
            return [ds_v(slot, f[1], 0, f[2]), ds_v(slot, f[1], 1, f[2])]
        return [ds_k(slot, f[2], f[1], f[3])]

    groups = list(range(8)) + ([None] if do_l else []) + list(range(8, len(frs)))
    gstart = {}
    for gi, n in enumerate(groups):
        if n is not None:
            gstart[n] = gi * c
    nm = len(groups) * c
    sched = {}
    n = 2
    while n < len(allf):
        if allf[n][0] == "k" and n + 1 < len(allf) and allf[n + 1][0] == "k":
            sched.setdefault(gstart[n - 2], []).extend([n, n + 1]); n += 2
        else:
            sched.setdefault(gstart[n - 2], []).append(n); n += 1
    order = []
    for k in (0, 1):
        order += [k] * (2 if allf[k][0] == "v" else 1)
    units = softmax_units((j + 1) % 2, c) if do_sm else []
    if "nosm" in XF:
        units = []
    units = merge_units(units, list(va_extra))
    bar_at = 8 * c + 1 if do_qk else nm - 1
    vunits = []
    if do_dma and "nodma" not in XF:
        vunits += split_vm_units(dma_group(j % NS))
    vunits += list(vm_extra)
    vgaps = {}
    post = []
    g = bar_at + 1
    for u in vunits:
        while g in sched:
            g += 1
        if g < nm:
            vgaps[g] = u; g += 1
        else:
            post += u
    g0 = 2
    free = [m for m in range(g0, nm - 1) if m not in sched and m not in vgaps]
    assign = {}
    nu = len(units)
    for k in range(nu):
        gi = free[(k * len(free)) // nu]
        assign.setdefault(gi, []).append(units[k])
    out = list(pre)
    m = 0
    for n in groups:
        if n is not None:
            f = frs[n]
            last = max(i for i, t in enumerate(order) if t == n)
            out.append(waitl(len(order) - 1 - last))
            slot = V_FRAG + ((base + n) % NF) * 4
        for b in range(c):
            if n is None:
                out.append(lmfma(b, p))
            elif f[0] == "v":
                db = f[1]
                out.append(mfma("a", O(b, db), "v", slot, "v", S(p, b), "a", O(b, db)))
            else:
                kb, ds = f[1], f[2]
                d = S(p, b) + kb * 4
                if ds == 0:
                    out.append(mfma("v", d, "v", slot, "a", QA(b, ds), "v", M(b)))
                else:
                    out.append(mfma("v", d, "v", slot, "a", QA(b, ds), "v", d))
            for k in sched.get(m, []):
                if "nolds" not in XF:
                    out += reads(k)
                order += [k] * (2 if allf[k][0] == "v" else 1)
            if m in vgaps:
                out += fix_m0(vgaps[m])
            ops = []
            for u in assign.get(m, []):
                ops += u
            out += flat_fix(ops)
            if m == bar_at:
                if l_next:
                    out.append(nop(1))
                    for bb in range(c):
                        out.append(lmfma(bb, (j + 1) % 2))
                    out.append(nop(7))
                out += list(before_bar)
                if "nobar" not in XF:
                    if vm_wait is not None:
                        out.append(waitv(vm_wait))
                    out.append(barrier())
                out += list(after_bar)
            m += 1
    out += fix_m0(post)
    fs.next = (base + len(frs)) % NF
    return fix_alias(out)


NALIAS = [0]


def fix_alias(ins):
    out = []
    for x in ins:
        if x.kind == "mfma":
            idx = {rg[1] for rg in x.r | x.c}
            need = 0
            dist = 0
            for y in reversed(out):
                if y.kind == "label":
                    continue
                if dist >= 2:
                    break
                if y.kind in ("valu", "trans") and any(rg[1] in idx for rg in y.w):
                    need = max(need, 2 - dist)
                if y.txt.startswith("v_pk_"):
                    need = max(need, 2 - dist)
                dist += (int(y.txt.split()[1]) + 1) if y.kind == "nop" else 1
            if need:
                out.append(nop(need - 1)); NALIAS[0] += 1
        out.append(x)
    return out


def check_hazards(ins, name):
    real = [x for x in ins if x.kind != "label"]
    lastm, lastv, lastt, lastc, lastst = {}, {}, {}, {}, {}
    pos = 0
    errs = 0

    def bad(msg, x):
        nonlocal errs
        print(f"[{name}] HAZARD {msg}: {x.txt}"); errs += 1
    for x in real:
        states = 1
        if x.kind == "nop":
            states = int(x.txt.split()[1]) + 1
        if x.kind in ("valu", "trans"):
            for rg in x.r | x.w:
                if rg in lastm and pos - lastm[rg][0] - 1 < (8 if lastm[rg][1] == 4 else 12):
                    bad(f"mfma->valu {rg}", x)
            for rg in x.w:
                if rg in lastc and pos - lastc[rg][0] - 1 < (3 if lastc[rg][1] == 4 else 7):
                    bad(f"mfmaC->valu write {rg}", x)
                if rg in lastst and pos - lastst[rg] - 1 < 2:
                    bad(f"store data WAR {rg}", x)
            if x.kind == "valu":
                for rg in x.r:
                    if rg in lastt and pos - lastt[rg] - 1 < 1:
                        bad(f"trans->valu {rg}", x)
            if "permlane" in x.txt:
                for rg in x.r | x.w:
                    if rg in lastv and pos - lastv[rg] - 1 < 2:
                        bad(f"valu->permlane {rg}", x)
            if "readfirstlane" in x.txt:
                for rg in x.r:
                    if rg in lastv and pos - lastv[rg] - 1 < 1:
                        bad(f"valu->readlane {rg}", x)
        if x.kind in ("vmem", "lds"):
            for rg in x.r | x.w:
                if rg in lastm and pos - lastm[rg][0] - 1 < (8 if lastm[rg][1] == 4 else 12):
                    bad(f"mfma->mem {rg}", x)
        if x.kind == "mfma":
            for rg in x.r | x.c:
                for al in (("v", rg[1]), ("a", rg[1])):
                    if al in lastv and pos - lastv[al] - 1 < 2:
                        bad(f"valu->mfma {rg} (alias {al})", x)
            for rg in x.r:
                if rg in lastm and pos - lastm[rg][0] - 1 < (8 if lastm[rg][1] == 4 else 12):
                    bad(f"mfma->mfma AB {rg}", x)
            for rg in x.c:
                if rg in lastm and not (lastm[rg][2] == x.c and lastm[rg][1] == x.passes):
                    if pos - lastm[rg][0] - 1 < (6 if lastm[rg][1] == 4 else 10):
                        bad(f"mfma->mfma C(overlap) {rg}", x)
            for rg in x.w:
                if rg in lastst and pos - lastst[rg] - 1 < 2:
                    bad(f"store data WAR(mfma) {rg}", x)
        if x.kind == "mfma":
            for rg in x.w:
                lastm[rg] = (pos, x.passes, x.w); lastv.pop(rg, None); lastt.pop(rg, None)
            for rg in x.c:
                lastc[rg] = (pos, x.passes)
        elif x.kind in ("valu", "trans"):
            for rg in x.w:
                lastv[rg] = pos; lastm.pop(rg, None)
                if x.kind == "trans":
                    lastt[rg] = pos
                else:
                    lastt.pop(rg, None)
        elif x.kind in ("vmem", "lds"):
            for rg in x.w:
                lastm.pop(rg, None); lastv.pop(rg, None); lastt.pop(rg, None)
            if "store" in x.txt:
                for rg in x.r:
                    lastst[rg] = pos
        pos += states
    return errs


def stamp():
    if "stamp" not in XF:
        return []
    return [Ins("s_memtime s[60:61]", "other"), Ins("s_memrealtime s[62:63]", "other"), Ins("s_waitcnt lgkmcnt(0)", "wait"),
            Ins("s_mov_b32 m0, s64", "other"), Ins("s_nop 1", "other"), Ins(f"v_writelane_b32 v{V_ST0}, s60, m0", "other"),
            Ins(f"v_writelane_b32 v{V_ST1}, s62, m0", "other"), Ins("s_add_u32 s64, s64, 1", "salu")]


def stamp_store():
    if "stamp" not in XF:
        return []
    t = f"""s_waitcnt vmcnt(0)
    s_load_dwordx2 s[72:73], s[0:1], 40
    s_waitcnt lgkmcnt(0)
    s_mov_b32 s74, 0x1000000
    s_mov_b32 s75, 0x00020000
    s_lshl_b32 s76, s2, 12
    s_lshl_b32 s77, s31, 9
    s_add_u32 s76, s76, s77
    v_and_b32 v9, 63, v0
    v_lshlrev_b32 v9, 2, v9
    buffer_store_dword v{V_ST0}, v9, s[72:75], s76 offen
    buffer_store_dword v{V_ST1}, v9, s[72:75], s76 offen offset:256
    s_waitcnt vmcnt(0)"""
    return stamp() + [Ins(x.strip(), "other") for x in t.split("\n")]


def sprinkle(mf, fill):
    nm = sum(1 for x in mf if x.kind == "mfma")
    out = []
    fi = 0
    k = 0
    i = 0
    while i < len(mf):
        x = mf[i]
        out.append(x)
        i += 1
        if x.kind == "mfma":
            while i < len(mf) and mf[i].kind == "lds":
                out.append(mf[i]); i += 1
            k += 1
            tgt = (len(fill) * k) // nm
            while fi < tgt:
                out.append(fill[fi]); fi += 1
    out += fill[fi:]
    return out


def qk_plain(fs, c, tile_slot, p, cinit):
    o = []
    seq = [(kb, ds) for kb in range(2) for ds in range(4)]
    for k in range(3):
        o.append(ds_k((fs.next + k) % NF, seq[k][1], seq[k][0], tile_slot))
    for n, (kb, ds) in enumerate(seq):
        o.append(waitl(min(2, 7 - n)))
        sl = V_FRAG + ((fs.next + n) % NF) * 4
        for b in range(c):
            d = S(p, b) + kb * 4
            if ds == 0:
                o.append(mfma("v", d, "v", sl, "a", QA(b, ds), None if cinit is None else "v", M(b)))
            else:
                o.append(mfma("v", d, "v", sl, "a", QA(b, ds), "v", d))
            if b == 0 and n + 3 < 8:
                o.append(ds_k((fs.next + n + 3) % NF, seq[n + 3][1], seq[n + 3][0], tile_slot))
    fs.next = (fs.next + 8) % NF
    return o


def xlane(c, op, src):
    o = []
    for b in range(c):
        t, t2 = T(b)
        if src(b) != t:
            o.append(v_mov(t, src(b)))
        o.append(v_mov(t2, src(b)))
    o.append(nop(1))
    for b in range(c):
        o.append(swap16(*T(b)))
    for b in range(c):
        t, t2 = T(b)
        o.append(op(t, t, t2))
        o.append(v_mov(t2, t))
    o.append(nop(1))
    for b in range(c):
        o.append(swap32(*T(b)))
    for b in range(c):
        t, t2 = T(b)
        o.append(op(t, t, t2))
    return o


def lread(b, d):
    lp, l = LQ(b)
    return acc_rd(d, l) if lp == "a" else v_mov(d, l)


def lreduce(c):
    o = []
    for b in range(c):
        o.append(lread(b, V_RI + 2 * b + 1))
    for b in range(c):
        o.append(Ins(f"v_rcp_f32 v{V_RI+2*b}, v{V_RI+2*b+1}", "trans", vr(V_RI + 2 * b, 1), vr(V_RI + 2 * b + 1, 1), cost=8))
    o.append(nop(0))
    for b in range(c):
        o.append(v_mov(V_RI + 2 * b + 1, V_RI + 2 * b))
    return o


def epilogue_ops(c):
    o = []
    k = 0
    for b in range(c):
        rinv = V_RI + 2 * b
        o.append(salu(f"s_add_u32 s{S_TMP}, s{S_QBASE}, {b*4096}"))
        for db in range(0, 8, 2):
            x = V_QR + (k % 8) * 8
            k += 1
            for r in range(8):
                o.append(acc_rd(x + r, O(b, db) + r))
            for r in range(0, 8, 2):
                o.append(valu(f"v_pk_mul_f32 v[{x+r}:{x+r+1}], v[{x+r}:{x+r+1}], v[{rinv}:{rinv+1}]",
                              vr(x + r, 2), vr(x + r, 2) + vr(rinv, 2)))
            for r in range(4):
                o.append(v_cvt(x + r, x + 2 * r, x + 2 * r + 1))
            o.append(nop(1))
            o.append(swap16(x + 0, x + 2))
            o.append(swap16(x + 1, x + 3))
            o.append(Ins(f"buffer_store_dwordx4 v[{x}:{x+3}], v{V_OOFF}, s[{S_O}:{S_O+3}], s{S_TMP} offen offset:{db*32}{OMOD}",
                         "vmem", (), vr(x, 4) + vr(V_OOFF, 1), cost=24))
    return o


def zero_acc(c):
    o = []
    for a in range(0, 32 * c, 16):
        o.append(mfma_zero16(a))
    o.append(mfma_zero16(240))
    if c > 4:
        for r in range(4):
            o.append(valu(f"v_mov_b32 v{V_L4+r}, 0", vr(V_L4 + r, 1), []))
    return o


def pro_block(c, fs, epi):
    o = []
    half = (len(epi) * 3) // 5
    o += sprinkle(qk_plain(fs, c, 0, 0, None), epi[:half])
    o.append(nop(7))
    for b in range(c):
        s = S(0, b)
        t, t2 = T(b)
        o.append(v_max3(t, s, s + 1, s + 2))
        o.append(v_max3(t2, s + 3, s + 4, s + 5))
        o.append(v_max3(t, t, s + 6, s + 7))
        o.append(v_max(t, t, t2))
    o += xlane(c, v_max, lambda b: T(b)[0])
    for b in range(c):
        t = T(b)[0]
        for r in range(4):
            o.append(valu(f"v_sub_f32 v{M(b)+r}, 0, v{t}", vr(M(b) + r, 1), vr(t, 1)))
    fill = list(epi[half:])
    fill += zero_acc(c)
    for b in range(c):
        t = T(b)[0]
        for r in range(8):
            fill.append(v_sub(S(0, b) + r, S(0, b) + r, t))
    sm = []
    for u in softmax_units(0, c):
        sm += u
    fill += flat_fix(sm)
    o.append(nop(1))
    o += sprinkle(qk_plain(fs, c, 1, 1, True), fill)
    for k in range(2):
        sl = (fs.next + k) % NF
        o += [ds_v(sl, k, 0, 0), ds_v(sl, k, 1, 0)]
    return fix_alias(o)


def flag_write(c):
    o = []
    for b in range(c):
        o.append(lread(b, V_T + b))
    for b in range(c):
        d = S_FLAG if b == 0 else S_FL2
        o.append(valu(f"v_cmp_nge_f32 s[{d}:{d+1}], s{S_THR}, v{V_T+b}", [], vr(V_T + b, 1)))
        if b > 0:
            o.append(nop(1))
            o.append(salu(f"s_or_b64 s[{S_FLAG}:{S_FLAG+1}], s[{S_FLAG}:{S_FLAG+1}], s[{S_FL2}:{S_FL2+1}]"))
    o.append(nop(1))
    o.append(salu(f"s_cmp_lg_u64 s[{S_FLAG}:{S_FLAG+1}], 0"))
    o.append(salu(f"s_cselect_b32 s{S_TMP}, 1, 0"))
    o.append(valu(f"v_mov_b32 v{V_T+10}, s{S_TMP}", vr(V_T + 10, 1), []))
    o.append(Ins(f"ds_write_b32 v{V_FLAGA}, v{V_T+10}", "lds", (), vr(V_FLAGA, 1) + vr(V_T + 10, 1)))
    o.append(waitl(0))
    return o


def flag_read(tag):
    t = V_T + 4
    o = [Ins(f"ds_read_b128 v[{t}:{t+3}], v{V_FLAGB}", "lds", vr(t, 4), vr(V_FLAGB, 1)), waitl(0),
         valu(f"v_or3_b32 v{t}, v{t}, v{t+1}, v{t+2}", vr(t, 1), vr(t, 3)),
         valu(f"v_or_b32 v{t}, v{t}, v{t+3}", vr(t, 1), vr(t, 1) + vr(t + 3, 1)),
         nop(0),
         valu(f"v_readfirstlane_b32 s{S_TMP}, v{t}", [], vr(t, 1)),
         nop(1),
         salu(f"s_cmp_lg_u32 s{S_TMP}, 0"),
         salu(f"s_cbranch_scc1 L_{tag}_fallback")]
    return o


def fallback(c, tag):
    fs = FragState()
    o = [label(f"L_{tag}_fallback"), waitv(0), waitl(0), barrier()]
    o.append(salu(f"s_mov_b32 s{S_KVOFF}, s{S_KVBASE}"))
    o.append(salu(f"s_mov_b32 s{S_LOOP}, 0"))
    for b in range(c):
        o.append(valu(f"v_mov_b32 v{M(b)}, 0xff800000", vr(M(b), 1), []))
    o += zero_acc(c)
    o.append(label(f"L_{tag}_fbloop"))
    body = []
    body += fix_m0(dma_group(0))
    body += [waitv(0), barrier()]
    body += qk_plain(fs, c, 0, 0, None)
    body.append(nop(7))
    for b in range(c):
        s = S(0, b)
        t, t2 = T(b)
        body.append(v_max3(t, s, s + 1, s + 2))
        body.append(v_max3(t2, s + 3, s + 4, s + 5))
        body.append(v_max3(t, t, s + 6, s + 7))
        body.append(v_max(t, t, t2))
    body += xlane(c, v_max, lambda b: T(b)[0])
    for b in range(c):
        t, t2 = T(b)
        m, al = M(b), M(b) + 1
        s = S(0, b)
        body.append(v_max(t, t, m))
        body.append(v_sub(al, m, t))
        body.append(v_exp(al, al))
        body.append(v_mov(m, t))
        lp, l = LQ(b)
        for r in range(4):
            if lp == "a":
                x = V_S + 40 + r
                body.append(acc_rd(x, l + r))
                body.append(v_mul(x, x, al))
                body.append(acc_wr(l + r, x))
            else:
                body.append(v_mul(l + r, l + r, al))
        for r in range(32):
            x = V_S + 40 + r
            body.append(acc_rd(x, O(b, 0) + r))
            body.append(v_mul(x, x, al))
            body.append(acc_wr(O(b, 0) + r, x))
        for r in range(8):
            body.append(v_sub(s + r, s + r, t))
    sm = []
    for u in softmax_units(0, c):
        sm += u
    body += flat_fix(sm)
    body.append(nop(1))
    for db in range(8):
        sl = fs.next
        body += [ds_v(sl, db, 0, 0), ds_v(sl, db, 1, 0), waitl(0)]
        for b in range(c):
            body.append(mfma("a", O(b, db), "v", V_FRAG + sl * 4, "v", S(0, b), "a", O(b, db)))
        fs.next = (fs.next + 1) % NF
    for b in range(c):
        body.append(lmfma(b, 0))
    body.append(barrier())
    body.append(salu(f"s_add_u32 s{S_LOOP}, s{S_LOOP}, 1"))
    body.append(salu(f"s_cmp_lt_u32 s{S_LOOP}, {NT}"))
    body.append(salu(f"s_cbranch_scc1 L_{tag}_fbloop"))
    body = fix_alias(body)
    o += body
    post = [nop(7)]
    post.append(salu(f"s_mov_b32 s{S_KVOFF}, s{S_KVNEXT}"))
    for g in range(NS):
        post += fix_m0(dma_group(g))
    if c > 4:
        for u in conv_units(4):
            post += u
    for u in qacc_units(c):
        post += u
    post += [waitv(0), barrier()]
    post.append(salu(f"s_cmp_eq_u32 s{S_BLK}, 0"))
    post.append(salu(f"s_cbranch_scc1 L_{tag}_bnd"))
    post.append(salu(f"s_branch L_{tag}_fin"))
    o += post
    errs = check_hazards(o[:o.index(body[0])] + body + body + post, tag + "_fb")
    return o, errs


def tail_code(c, tag, fs, last):
    out = []
    log = []
    for g in range(24, 32):
        log += [("g", g)] * GOPS
        if not last:
            log += [("q", 2 + (g - 24) // 4)]
    cu = []
    for b in range(4):
        cu += conv_units(b)
    for j in range(24, 32):
        need = j + 3
        kw = {}
        if need <= 31:
            lastop = max(i for i, t in enumerate(log) if t == ("g", need))
            vmw = len(log) - 1 - lastop
        elif j == 31 and not last:
            lastop = max(i for i, t in enumerate(log) if t == ("n", 2))
            vmw = len(log) - 1 - lastop
        else:
            vmw = None
        vx = []
        if not last:
            if c > 4 and j < 28:
                vx = [q_load1(16 + j - 24, S_QNEXT)]
            va = []
            if 25 <= j <= 30:
                k0 = (j - 25) * len(cu) // 6
                k1 = (j - 24) * len(cu) // 6
                va = cu[k0:k1]
                bmax = (k1 - 1) // 32
                cand = [i for i, t in enumerate(log) if t == ("q", bmax)]
                if cand:
                    kw["pre"] = [waitv(len(log) - 1 - max(cand))]
            if j == 31:
                if c > 4:
                    lastop = max(i for i, t in enumerate(log) if t == ("q", 4))
                    kw["pre"] = [waitv(len(log) - 1 - lastop)]
                    va += conv_units(4)
                va += qacc_units(c)
            kw["va_extra"] = va
        if j == 30:
            kw["before_bar"] = flag_write(c)
            kw["after_bar"] = flag_read(tag)
            kw["l_next"] = True
        if j == 31:
            kw["do_l"] = False
        if last and j == 31:
            it = iteration(j, c, fs, do_qk=False, do_sm=False, do_dma=False, vm_wait=None, pre_v=False, do_l=False)
            it = [x for x in it if x.kind != "barrier"]
            out += it
            continue
        if "stamp2" in XF and not last and j > 24:
            out += stamp()
        out += iteration(j, c, fs, do_qk=(j + 2 < NT), do_sm=(j + 1 < NT), do_dma=not last, vm_wait=vmw,
                         pre_v=(j + 1 < NT), vm_extra=vx, **kw)
        if not last:
            log += [("n", j - 24)] * GOPS
            log += [("q", 4)] * len(vx)
    return out


def wave_program(c, tag):
    errs = 0
    prog = [label(f"L_{tag}_start")]
    ent = []
    log = []
    ent += fix_m0(dma_group(0)); log += [("g", 0)] * GOPS
    for b in range(c):
        ent += q_loads(b, S_QBASE); log += [("q", b)] * 4
    for g in (1, 2):
        ent += fix_m0(dma_group(g)); log += [("g", g)] * GOPS
    for b in range(c):
        lastop = max(i for i, t in enumerate(log) if t == ("q", b))
        ent.append(waitv(len(log) - 1 - lastop))
        for u in conv_units(b):
            ent += u
        for r in range(16):
            ent.append(acc_wr(A_Q + b * 16 + r, V_QR + b * 16 + r))
    ent.append(waitv(0))
    ent.append(barrier())
    ent += stamp()
    fs = FragState()
    rest = []
    for g in range(3, NS):
        rest += fix_m0(dma_group(g))
    if "touch" in XF:
        tt = V_T + 9
        rest.append(Ins(f"buffer_load_dword v{tt}, v{V_DMA_A}, s[{S_K}:{S_K+3}], s{S_KVNEXT} offen", "vmem", vr(tt, 1), vr(V_DMA_A, 1)))
        rest.append(Ins(f"buffer_load_dword v{tt}, v{V_DMA_A}, s[{S_V}:{S_V+3}], s{S_KVNEXT} offen", "vmem", vr(tt, 1), vr(V_DMA_A, 1)))
        rest.append(Ins(f"buffer_load_dword v{tt}, v{V_QOFF}, s[{S_Q}:{S_Q+3}], s{S_QNEXT} offen", "vmem", vr(tt, 1), vr(V_QOFF, 1)))
        rest.append(Ins(f"buffer_load_dword v{tt}, v{V_QOFF}, s[{S_O}:{S_O+3}], s{S_QBASE} offen", "vmem", vr(tt, 1), vr(V_QOFF, 1)))
        rest.append(Ins(f"buffer_load_dword v{tt}, v{V_QOFF}, s[{S_O}:{S_O+3}], s{S_QNEXT} offen", "vmem", vr(tt, 1), vr(V_QOFF, 1)))
    pro1 = pro_block(c, fs, rest)
    st = fs.next
    prog += ent + pro1
    prog.append(label(f"L_{tag}_go"))
    prog += stamp()
    prog.append(salu(f"s_mov_b32 s{S_LOOP}, 0"))
    prog.append(salu(f"s_lshl_b32 s{S_CODE}, s{S_BLK}, 4"))
    body = []
    n0 = NALIAS[0]
    for j in range(8):
        body += iteration(j, c, fs, vm_extra=[guarded_qloads(j, tag)])
    print(tag, "alias nops in loop body:", NALIAS[0] - n0)
    assert fs.next == st
    prog.append(label(f"L_{tag}_loop"))
    if "execq" in XF:
        prog += [salu(f"s_cmp_eq_u32 s{S_CODE}, 1"), salu(f"s_cselect_b64 s[{S_EXA}:{S_EXA+1}], -1, 0"),
                 salu(f"s_cmp_eq_u32 s{S_CODE}, 2"), salu(f"s_cselect_b64 s[{S_EXB}:{S_EXB+1}], -1, 0")]
    prog += body
    lend = [salu(f"s_add_u32 s{S_CODE}, s{S_CODE}, 1"), salu(f"s_add_u32 s{S_LOOP}, s{S_LOOP}, 1"), salu(f"s_cmp_lt_u32 s{S_LOOP}, 3"),
            salu(f"s_cbranch_scc1 L_{tag}_loop")]
    prog += lend
    prog += stamp()
    prog.append(salu(f"s_cmp_lg_u32 s{S_BLK}, 0"))
    prog.append(salu(f"s_cbranch_scc1 L_{tag}_tail2"))
    prog.append(salu(f"s_mov_b32 s{S_KVOFF}, s{S_KVNEXT}"))
    fs1 = FragState(); fs1.next = st
    tail1 = tail_code(c, tag, fs1, False)
    prog += tail1
    prog.append(label(f"L_{tag}_bnd"))
    prog += stamp()
    bnd = [nop(7)] + lreduce(c)
    fsb = FragState()
    bnd += pro_block(c, fsb, [nop(0)] + epilogue_ops(c))
    assert fsb.next == st
    bnd += [salu(f"s_mov_b32 s{S_QBASE}, s{S_QNEXT}"), salu(f"s_mov_b32 s{S_KVBASE}, s{S_KVNEXT}"),
            salu(f"s_mov_b32 s{S_KVNEXT}, 0x40000000"), salu(f"s_mov_b32 s{S_BLK}, 1"),
            salu(f"s_branch L_{tag}_go")]
    prog += bnd
    prog.append(label(f"L_{tag}_tail2"))
    fs2 = FragState(); fs2.next = st
    tail2 = tail_code(c, tag, fs2, True)
    prog += tail2
    prog.append(label(f"L_{tag}_fin"))
    prog += stamp()
    fin = [nop(7)] + lreduce(c) + [nop(0)] + epilogue_ops(c)
    prog += fin
    prog += stamp_store()
    prog.append(Ins("s_endpgm", "other"))
    fb, e = fallback(c, tag)
    errs += e
    prog += fb
    errs += check_hazards(ent + pro1 + body + body + tail1 + bnd + body + tail2 + fin, tag)
    return prog, errs


def main():
    out = []
    out.append(f"; @launch grid=(256,1,1) block=(256,1,1) lds={LDS_BYTES}")
    out.append('.amdgcn_target "amdgcn-amd-amdhsa--gfx950"')
    out.append(".text")
    out.append(f".globl {KNAME}")
    out.append(".p2align 8")
    out.append(f".type {KNAME},@function")
    out.append(f"{KNAME}:")
    cu = f2u(SCALE_LOG2E)
    t = V_T
    setup = f"""
    s_cmp_ge_u32 s2, 256
    s_cbranch_scc1 L_exit
""" + (f"""    s_mov_b32 s64, 0
    s_memtime s[60:61]
    s_memrealtime s[62:63]
    s_waitcnt lgkmcnt(0)
    v_writelane_b32 v{V_ST0}, s60, 0
    v_writelane_b32 v{V_ST1}, s62, 0
    s_add_u32 s64, s64, 1
""" if "stamp" in XF else "") + f"""
    s_load_dwordx4 s[4:7], s[0:1], 0
    s_load_dwordx4 s[8:11], s[0:1], 16
    ; head/half decode: xcd = id&7, slot = id>>3, head = (slot>>1)*8 + xcd, half = slot&1
    s_and_b32 s{S_TMP}, s2, 7
    s_lshr_b32 s{S_TMP+1}, s2, 3
    s_and_b32 s{S_HALF}, s{S_TMP+1}, 1
    s_lshr_b32 s{S_TMP+1}, s{S_TMP+1}, 1
    s_lshl_b32 s{S_TMP+1}, s{S_TMP+1}, 3
    s_add_u32 s{S_HEAD}, s{S_TMP+1}, s{S_TMP}
    s_lshl_b32 s{S_KVOFF}, s{S_HEAD}, 18
    s_mov_b32 s{S_KVBASE}, s{S_KVOFF}
    v_lshrrev_b32 v{t}, 6, v0
    v_and_b32 v{t+1}, 63, v0            ; lane
    v_readfirstlane_b32 s{S_WAVE}, v{t}
    v_lshrrev_b32 v{t+2}, 4, v{t+1}   ; g
    v_and_b32 v{t+3}, 15, v{t+1}      ; i
    s_mul_i32 s{S_QBASE}, s{S_HEAD}, 155648
    s_mul_i32 s{S_TMP}, s{S_HALF}, 77824
    s_add_u32 s{S_QBASE}, s{S_QBASE}, s{S_TMP}
    s_mul_i32 s{S_TMP}, s{S_WAVE}, 20480
    s_add_u32 s{S_QBASE}, s{S_QBASE}, s{S_TMP}
    s_lshl_b32 s{S_W2048}, s{S_WAVE}, 11
    s_add_u32 s{S_QNEXT}, s{S_QBASE}, {128*155648}
    s_add_u32 s{S_KVNEXT}, s{S_KVOFF}, {128*262144}
    s_mov_b32 s{S_BLK}, 0
    s_mov_b32 s{S_C0}, 0x{cu:08x}
    s_mov_b32 s{S_C0+1}, 0x{cu:08x}
    s_mov_b32 s{S_THR}, 0x{f2u(THR):08x}
    v_mov_b32 v{V_ONE}, 0x3f803f80
    v_mov_b32 v{V_ONE+1}, 0x3f803f80
    v_mov_b32 v{V_ONE+2}, 0x3f803f80
    v_mov_b32 v{V_ONE+3}, 0x3f803f80
    v_mov_b32 v{V_Z}, 0
    v_mov_b32 v{V_Z+1}, 0
    v_mov_b32 v{V_Z+2}, 0
    v_mov_b32 v{V_Z+3}, 0
    ; Q voffset = i*256 + g*16
    v_lshlrev_b32 v{V_QOFF}, 8, v{t+3}
    v_lshl_add_u32 v{V_QOFF}, v{t+2}, 4, v{V_QOFF}
    ; O voffset = i*256 + (g&1)*32 + (g>>1)*16
    v_lshlrev_b32 v{V_OOFF}, 8, v{t+3}
    v_and_b32 v{t+4}, 1, v{t+2}
    v_lshl_add_u32 v{V_OOFF}, v{t+4}, 5, v{V_OOFF}
    v_lshrrev_b32 v{t+4}, 1, v{t+2}
    v_lshl_add_u32 v{V_OOFF}, v{t+4}, 4, v{V_OOFF}
    ; DMA voffsets: A = w*2048 + g*256 + ((i ^ (g<<1))*16) ; B = same with g+4
    v_lshlrev_b32 v{t+4}, 1, v{t+2}
    v_xor_b32 v{t+5}, v{t+3}, v{t+4}
    v_lshlrev_b32 v{t+5}, 4, v{t+5}
    v_lshl_add_u32 v{t+5}, v{t+2}, 8, v{t+5}
    v_add_u32 v{V_DMA_A}, s{S_W2048}, v{t+5}
    v_xor_b32 v{V_DMA_B}, 0x80, v{V_DMA_A}
    ; K read addr(ds) = i*256 + (((4ds+g) ^ ((i&7)<<1))*16)
    v_and_b32 v{t+4}, 7, v{t+3}
    v_lshlrev_b32 v{t+4}, 1, v{t+4}
    v_lshlrev_b32 v{t+6}, 8, v{t+3}
"""
    for ds in range(4):
        setup += f"""    v_add_u32 v{t+5}, {4*ds}, v{t+2}
    v_xor_b32 v{t+5}, v{t+5}, v{t+4}
    v_lshl_add_u32 v{V_KADDR+ds}, v{t+5}, 4, v{t+6}
"""
    setup += f"""    ; V read addr(db) = VREG + (4g+r)*256 + ((db^x)*32) + cc*8 ; r=(lane>>2)&3, cc=lane&3, x=4(g&1)+r
    v_lshrrev_b32 v{t+4}, 2, v{t+1}
    v_and_b32 v{t+4}, 3, v{t+4}          ; r
    v_and_b32 v{t+5}, 3, v{t+1}          ; cc
    v_lshl_add_u32 v{t+6}, v{t+2}, 2, v{t+4}   ; 4g+r
    v_and_b32 v{t+7}, 7, v{t+6}          ; x
    v_lshlrev_b32 v{t+6}, 8, v{t+6}
    v_lshl_add_u32 v{t+6}, v{t+5}, 3, v{t+6}
    v_add_u32 v{t+6}, {VREG}, v{t+6}
"""
    for db in range(8):
        setup += f"""    v_xor_b32 v{t+5}, {db}, v{t+7}
    v_lshl_add_u32 v{V_VADDR+db}, v{t+5}, 5, v{t+6}
"""
    setup += f"""    v_mov_b32 v{V_FLAGB}, {FLAGREG}
    v_lshl_add_u32 v{V_FLAGA}, v{t}, 2, v{V_FLAGB}
    s_waitcnt lgkmcnt(0)
    s_mov_b32 s{S_Q}, s4
    s_mov_b32 s{S_Q+1}, s5
    s_mov_b32 s{S_Q+2}, 39845888
    s_mov_b32 s{S_Q+3}, 0x00020000
    s_mov_b32 s{S_K}, s6
    s_mov_b32 s{S_K+1}, s7
    s_mov_b32 s{S_K+2}, 67108864
    s_mov_b32 s{S_K+3}, 0x00020000
    s_mov_b32 s{S_V}, s8
    s_mov_b32 s{S_V+1}, s9
    s_mov_b32 s{S_V+2}, 67108864
    s_mov_b32 s{S_V+3}, 0x00020000
    s_mov_b32 s{S_O}, s10
    s_mov_b32 s{S_O+1}, s11
    s_mov_b32 s{S_O+2}, 39845888
    s_mov_b32 s{S_O+3}, 0x00020000
    s_cmp_ge_u32 s{S_WAVE}, 3
    s_cbranch_scc1 L_{VARIANTS[1][1]}_start
"""
    out.append(setup)
    errs = 0
    for c, tag in VARIANTS:
        ins, e = wave_program(c, tag)
        errs += e
        for x in ins:
            out.append(x.txt if x.kind == "label" else "    " + x.txt)
    out.append("L_exit:")
    out.append("    s_endpgm")
    out.append(f""".section .rodata,"a"
.p2align 6
.amdhsa_kernel {KNAME}
  .amdhsa_next_free_vgpr 512
  .amdhsa_next_free_sgpr 102
  .amdhsa_accum_offset 256
  .amdhsa_group_segment_fixed_size 0
  .amdhsa_kernarg_size 48
  .amdhsa_user_sgpr_count 2
  .amdhsa_user_sgpr_kernarg_segment_ptr 1
  .amdhsa_system_sgpr_workgroup_id_x 1
.end_amdhsa_kernel""")
    dst = sys.argv[1] if len(sys.argv) > 1 else "attn.s"
    open(dst, "w").write("\n".join(out) + "\n")
    print("hazard errors:", errs, "->", dst)


if __name__ == "__main__":
    main()
```
